```python
import torch

def _softmax(x, axis=-1):
    return torch.softmax(x, dim=axis)
def _gelu(x):
    return torch.nn.functional.gelu(x, approximate="tanh")
def _silu(x):
    return torch.nn.functional.silu(x)
def _sigmoid(x):
    return torch.sigmoid(x)
def _layernorm(x, axis=-1, eps=1e-5):
    m = x.mean(dim=axis, keepdim=True)
    v = x.var(dim=axis, keepdim=True, unbiased=False)
    return (x - m) / torch.sqrt(v + eps)
def _scatter_add(tgt, idx, src, axis=0):
    return tgt.clone().index_add_(axis, idx, src)
def _segment_sum(src, seg, n):
    out = torch.zeros((n,) + src.shape[1:], dtype=src.dtype)
    return out.index_add_(0, seg, src)
def _pad(x, pw):
    flat = tuple(v for pair in reversed(pw) for v in pair)
    return torch.nn.functional.pad(x, flat)

kernel_name = 'gated_mix__ssm_conv_h3__mixer_s_mlp__prompt'

def setup_inputs():

    _w = (lambda a: (lambda t: t.to(torch.bfloat16) if t.is_floating_point() else t)(torch.as_tensor(a)))
    def _A_setup():
        B, S, D = 1, 2048, 576
        ks = 4
        return {
            "q": _w((lambda *s: torch.randn(*s, dtype=torch.bfloat16) * 0.05)(B, S, D)),
            "k": _w((lambda *s: torch.randn(*s, dtype=torch.bfloat16) * 1.6)(B, S, D)),
            "v": _w((lambda *s: torch.randn(*s, dtype=torch.bfloat16) * 1.6)(B, S, D)),
            "shift_k": _w((lambda *s: torch.randn(*s, dtype=torch.bfloat16) * 1.6)(D, ks) * 0.5),
            "ssm_k": _w((lambda *s: torch.randn(*s, dtype=torch.bfloat16) * 3.2)(D, S) * (1.0 / S ** 0.5)),
            "ssm_D": _w((lambda *s: torch.randn(*s, dtype=torch.bfloat16) * 1.6)(D)),
        }
    _A_in = _A_setup()

    def _B_setup():
        B, S, D, F = 1, 2048, 576, 4608
        return {
            "x":  _w((lambda *s: torch.randn(*s, dtype=torch.bfloat16) * 0.05)(B, S, D)),
            "w1": _w((lambda *s: torch.randn(*s, dtype=torch.bfloat16) * 3.2)(D, D) * (D ** -0.5)),
            "w2": _w((lambda *s: torch.randn(*s, dtype=torch.bfloat16) * 3.2)(D, D) * (D ** -0.5)),
            "w3": _w((lambda *s: torch.randn(*s, dtype=torch.bfloat16) * 3.2)(D, F) * (D ** -0.5)),
            "w4": _w((lambda *s: torch.randn(*s, dtype=torch.bfloat16) * 1.6)(F, D) * (F ** -0.5)),
        }
    _B_in = _B_setup()

    return {
        "A_q": _A_in["q"],
        "A_k": _A_in["k"],
        "A_v": _A_in["v"],
        "A_shift_k": _A_in["shift_k"],
        "A_ssm_k": _A_in["ssm_k"],
        "A_ssm_D": _A_in["ssm_D"],
        "B_x": _B_in["x"],
        "B_w1": _B_in["w1"],
        "B_w2": _B_in["w2"],
        "B_w3": _B_in["w3"],
        "B_w4": _B_in["w4"],
        "gate_w": _w((lambda *s: torch.randn(*s, dtype=torch.bfloat16) * 0.05)(576) * 16.0),
    }

def reference(A_q, A_k, A_v, A_shift_k, A_ssm_k, A_ssm_D, B_x, B_w1, B_w2, B_w3, B_w4, gate_w):
    def _A_ref(q, k, v, shift_k, ssm_k, ssm_D):
        B, S, D = q.shape
        ks = shift_k.shape[-1]
        k_pad = _pad(k, ((0, 0), (ks - 1, 0), (0, 0)))
        k_shift = torch.zeros_like(k)
        for t in range(ks):
            k_shift = k_shift + k_pad[:, t:t + S, :] * shift_k[:, ks - 1 - t][None, None, :]
        kv = k_shift * v
        L = 2 * S
        kv_pad = _pad(kv, ((0, 0), (0, S), (0, 0)))
        kf_pad = _pad(ssm_k, ((0, 0), (0, S)))
        kv_f = (lambda x, axes=(-2,-1): torch.fft.rfft2(x.float(), dim=axes))(kv_pad[:, None, :, :], axes=(1, 2))
        kf_f = (lambda x, axes=(-2,-1): torch.fft.rfft2(x.float(), dim=axes))(kf_pad[:, None, :], axes=(1, 2))
        kf_f = (lambda x, *d: x.permute(*d))(kf_f, 1, 2, 0)
        y_f = kv_f * kf_f[None, :, :, :]
        y = (lambda x, s, axes=(-2,-1): torch.fft.irfft2(x, s=s, dim=axes).to(torch.bfloat16))(y_f, (1, L), axes=(1, 2))[:, 0, :S, :]
        y = y + kv * ssm_D[None, None, :]
        return q * y

    def _B_ref(x, w1, w2, w3, w4):
        B, S, D = x.shape
        h = _gelu(_layernorm(x, axis=-1) @ w1)
        c = D // 4
        g0 = _pad(h[:, :, 0*c:1*c], ((0, 0), (1, 0), (0, 0)))[:, :S, :]
        g1 = _pad(h[:, :, 1*c:2*c], ((0, 0), (0, 1), (0, 0)))[:, 1:, :]
        g2 = _pad(h[:, :, 2*c:3*c], ((0, 0), (2, 0), (0, 0)))[:, :S, :]
        g3 = _pad(h[:, :, 3*c:   ], ((0, 0), (0, 2), (0, 0)))[:, 2:, :]
        hs = torch.concatenate([g0, g1, g2, g3], axis=-1) @ w2
        x1 = x + hs
        h2 = _gelu(_layernorm(x1, axis=-1) @ w3) @ w4
        return x1 + h2

    x = A_q
    g = _sigmoid((x * gate_w).sum(-1, keepdims=True))
    a = _A_ref(x, A_k, A_v, A_shift_k, A_ssm_k, A_ssm_D)
    b = _B_ref(x, B_w1, B_w2, B_w3, B_w4)
    return g * a + (1 - g) * b
```

```python
import re

_REG = re.compile(r'^(-|\|)?(abs\()?([vas])(?:(\d+)|\[(\d+):(\d+)\])\)?\|?$')

def regs_of(tok):
    tok = tok.strip()
    if tok in ('vcc',):
        return {('s', 106), ('s', 107)}
    if tok == 'vcc_lo':
        return {('s', 106)}
    if tok == 'm0':
        return {('s', 124)}
    if tok == 'exec':
        return {('s', 126), ('s', 127)}
    m = _REG.match(tok)
    if not m:
        return set()
    f = m.group(3)
    if m.group(4) is not None:
        return {(f, int(m.group(4)))}
    return {(f, i) for i in range(int(m.group(5)), int(m.group(6)) + 1)}

TRANS = ('v_exp_f32', 'v_rcp_f32', 'v_rsq_f32', 'v_log_f32', 'v_sqrt_f32', 'v_sin_f32', 'v_cos_f32')

class Ins:
    __slots__ = ('text', 'op', 'kind', 'wr', 'rd', 'rdC', 'rdAB', 'passes', 'states', 'data', 'dpp', 'wide', 'D')
    def __init__(self, text):
        self.text = text
        t = text.split(';')[0].strip()
        parts = t.split(None, 1)
        self.op = op = parts[0]
        rest = parts[1] if len(parts) > 1 else ''
        ops = []
        cur = ''
        depth = 0
        for ch in rest:
            if ch == '[':
                depth += 1
            if ch == ']':
                depth -= 1
            if ch == ',' and depth == 0:
                ops.append(cur.strip()); cur = ''
            else:
                cur += ch
        if cur.strip():
            ops.append(cur.strip())
        mods = ''
        if ops:
            last = ops[-1].split(None, 1)
            ops[-1] = last[0]
            mods = last[1] if len(last) > 1 else ''
        self.wr = set(); self.rd = set(); self.rdC = set(); self.rdAB = set(); self.data = set()
        self.passes = 0; self.states = 1; self.dpp = False; self.wide = False; self.D = None
        R = [regs_of(o) for o in ops]
        if op == 's_nop':
            self.kind = 'nop'; self.states = int(ops[0], 0) + 1
        elif op.startswith('v_mfma'):
            self.kind = 'mfma'
            self.wr = R[0]; self.rdAB = R[1] | R[2]; self.rdC = R[3]; self.rd = self.rdAB | self.rdC
            self.passes = 8 if '32x32' in op else 4
            self.D = ops[0]
            self.data = ops[3]
        elif op.startswith('v_'):
            self.kind = 'trans' if op.split('_e32')[0].split('_e64')[0] in TRANS else 'valu'
            if op.startswith('v_dot2'):
                self.kind = 'dot'
            if op.startswith('v_permlane') and 'swap' in op:
                self.wr = R[0] | R[1]; self.rd = R[0] | R[1]; self.kind = 'permlane'
            elif op.startswith('v_swap'):
                self.wr = R[0] | R[1]; self.rd = R[0] | R[1]
            elif op.startswith('v_add_co') or op.startswith('v_sub_co') or op.startswith('v_addc_co') or op.startswith('v_subrev_co'):
                self.wr = R[0] | R[1]; self.rd = set().union(*R[2:])
            elif op.startswith('v_readfirstlane') or op.startswith('v_readlane'):
                self.wr = R[0]; self.rd = set().union(*R[1:]); self.kind = 'readlane'
            else:
                self.wr = R[0]; self.rd = set().union(*R[1:]) if len(R) > 1 else set()
                if op.startswith('v_fmac') or op.startswith('v_dot2c') or op.startswith('v_pk_fmac'):
                    self.rd |= R[0]
                if op.startswith('v_cmpx'):
                    self.wr |= regs_of('exec')
            if 'row_' in mods or 'quad_perm' in mods or 'wave_' in mods:
                self.dpp = True
            if self.kind == 'dot' and len(R) >= 3:
                self.rdAB = R[1] | R[2]
        elif op.startswith('buffer_') or op.startswith('global_'):
            self.kind = 'vmem'
            lds = (' lds' in (' ' + mods)) or '_lds_' in op
            if op in ('buffer_wbl2', 'buffer_inv'):
                pass
            elif 'store' in op or ('atomic' in op):
                allr = set().union(*R) if R else set()
                self.rd = allr
                d = R[0] if op.startswith('buffer_') else R[1]
                self.data = d
                self.wide = ('x3' in op or 'x4' in op)
                if 'atomic' in op and 'sc0' in mods and op.startswith('global_'):
                    self.wr = R[0]
            elif lds:
                self.rd = set().union(*R) | regs_of('m0')
            else:
                self.wr = R[0]; self.rd = set().union(*R[1:])
        elif op.startswith('ds_'):
            self.kind = 'ds'
            if op.startswith('ds_read') or op.startswith('ds_bpermute') or op.startswith('ds_swizzle') or op.startswith('ds_permute'):
                self.wr = R[0]; self.rd = set().union(*R[1:])
            else:
                self.rd = set().union(*R)
        elif op.startswith('s_'):
            self.kind = 'salu'
            if op.startswith('s_cmp') or op.startswith('s_cbranch') or op in ('s_branch', 's_barrier', 's_waitcnt', 's_endpgm', 's_setprio', 's_sleep'):
                self.rd = set().union(*R) if R else set()
            else:
                self.wr = R[0] if R else set(); self.rd = set().union(*R[1:]) if len(R) > 1 else set()
                if 'saveexec' in op:
                    self.wr |= regs_of('exec')
        else:
            raise ValueError('unknown op ' + text)

VALUISH = ('valu', 'trans', 'dot', 'permlane', 'readlane')

def need(p, c):
    n = 0
    pv = p.kind in VALUISH
    cv = c.kind in VALUISH
    vw = {r for r in p.wr if r[0] != 's'}
    sw = {r for r in p.wr if r[0] == 's'}
    if pv:
        if c.kind == 'mfma' and vw & c.rd:
            n = max(n, 2)
        if p.kind == 'trans' and cv and c.kind != 'trans' and vw & c.rd:
            n = max(n, 1)
        if p.kind == 'trans' and c.kind == 'trans' and vw & c.rd:
            n = max(n, 1)
        if sw:
            if c.kind == 'vmem' and sw & c.rd:
                n = max(n, 5)
            if cv and sw & c.rd:
                n = max(n, 4 if c.kind == 'readlane' else 2)
            if c.kind == 'salu' and sw & c.rd:
                n = max(n, 1)
            if ('s', 126) in sw and (c.kind in ('mfma', 'permlane', 'readlane') or c.dpp):
                n = max(n, 5)
        if c.kind == 'readlane' and vw & c.rd:
            n = max(n, 1)
        if c.kind == 'permlane' and vw & c.rd:
            n = max(n, 2)
        if c.dpp and vw & c.rd:
            n = max(n, 2)
        if p.kind == 'dot':
            if c.kind == 'dot' and c.op == p.op:
                if vw & c.rdAB:
                    n = max(n, 3)
            elif vw & (c.rd | c.wr):
                n = max(n, 3)
    if p.kind == 'mfma':
        big = p.passes == 8
        if c.kind == 'mfma':
            if p.wr & c.rdAB:
                n = max(n, 12 if big else 8)
            if p.wr & c.rdC:
                if not (c.data == p.D and c.passes == p.passes):
                    n = max(n, 10 if big else 6)
            elif p.wr & c.wr:
                n = max(n, 12 if big else 8)
        else:
            if p.wr & (c.rd | c.wr):
                n = max(n, 12 if big else 8)
            if cv and p.rdC & c.wr:
                n = max(n, 7 if big else 3)
    if p.kind == 'salu' and ('s', 124) in p.wr and c.kind in ('vmem', 'ds') and ('s', 124) in c.rd:
        n = max(n, 1)
    if p.kind == 'vmem' and p.wide and p.data and (p.data & c.wr):
        n = max(n, 2 if cv else 1)
    return n

class Asm:
    def __init__(self):
        self.out = []
        self.hist = []
        self.nops = 0
    def raw(self, s):
        self.out.append(s)
    def label(self, name):
        self.out.append(name + ':')
    def barrier_hist(self):
        self.hist = []
    def __call__(self, text):
        for line in text.split('\n'):
            line = line.strip()
            if not line or line.startswith(';'):
                continue
            if line.endswith(':'):
                self.label(line[:-1]); continue
            self.emit(line)
    def emit(self, line):
        ins = Ins(line)
        dist = 0
        req = 0
        for p in reversed(self.hist):
            n = need(p, ins)
            if n - dist > req:
                req = n - dist
            dist += p.states
            if dist > 14:
                break
        while req > 0:
            k = min(req, 16)
            nop = Ins(f's_nop {k-1}')
            self.hist.append(nop); self.out.append('    ' + nop.text); self.nops += 1
            req -= k
        self.hist.append(ins)
        if len(self.hist) > 40:
            self.hist = self.hist[-24:]
        self.out.append('    ' + line)
    def text(self):
        return '\n'.join(self.out) + '\n'

def magic(d, maxv):
    for sh in range(0, 31):
        m = -(-(1 << sh) // d)
        if m * maxv >= (1 << 32):
            break
        if all((x * m) >> sh == x // d for x in range(maxv + 1)):
            return m, sh
    raise ValueError

def vr(b, n=4):
    return f'v[{b}:{b+n-1}]' if n > 1 else f'v{b}'
def ar(b, n=4):
    return f'a[{b}:{b+n-1}]' if n > 1 else f'a{b}'
def sr(b, n=4):
    return f's[{b}:{b+n-1}]' if n > 1 else f's{b}'

def f2u(x):
    import struct
    return struct.unpack('<I', struct.pack('<f', x))[0]
```

```python
import sys, math
from asmlib import *

S, D, F = 2048, 576, 4608
TB = S * D * 2
WS_H = 0
WS_X1 = 0x240000
WS_UR = 0x480000
WS_Z = 0x6C0000
WS_G = 0x900000
WS_WP = 0xA00000
WS_PART = 0x1500000
WP_WAVE = 324 * 1024

P_Q, P_K, P_V, P_SK, P_SSMK, P_SSMD, P_BX, P_W1 = 16, 18, 20, 22, 24, 26, 28, 30
P_W2, P_W3, P_W4, P_GW, P_OUT, P_DBG, P_WS = 32, 34, 36, 38, 40, 42, 44

GA = -2.0 * math.sqrt(2.0 / math.pi) * math.log2(math.e)
GB = GA * 0.044715

def prologue(a, name, nwg):
    a.raw(f'.globl {name}\n.p2align 8\n.type {name},@function')
    a.label(name)
    a.barrier_hist()
    a(f'''
    s_cmp_ge_u32 s2, {nwg}
    s_cbranch_scc1 {name}_exit
    s_load_dwordx16 s[16:31], s[0:1], 0
    s_load_dwordx8 s[32:39], s[0:1], 64
    s_load_dwordx4 s[40:43], s[0:1], 96
    s_load_dwordx2 s[44:45], s[0:1], 112
    v_and_b32 v1, 63, v0
    v_lshrrev_b32 v2, 6, v0
    v_readfirstlane_b32 s3, v2
    s_waitcnt lgkmcnt(0)
    ''')

def srd(a, dst, ptr, off, nbytes):
    if off == 0:
        a(f's_mov_b32 s{dst}, s{ptr}\ns_mov_b32 s{dst+1}, s{ptr+1}')
    else:
        a(f's_add_u32 s{dst}, s{ptr}, {off}\ns_addc_u32 s{dst+1}, s{ptr+1}, 0')
    a(f's_mov_b32 s{dst+2}, {nbytes}\ns_mov_b32 s{dst+3}, 0x20000')

def sdiv(a, dst, src, d, maxv):
    m, sh = magic(d, maxv)
    a(f's_mul_i32 s{dst}, s{src}, {m}\ns_lshr_b32 s{dst}, s{dst}, {sh}')

def wtile_issue(a, srdw, sP, perm, vo, vt, s_off, s_step, s_4k):
    a(f'''
    v_lshrrev_b32 v{vt}, 3, v1
    v_and_b32 v{vt+1}, 6, v{vt}
    v_and_b32 v{vt+2}, 7, v1
    v_xor_b32 v{vt+1}, v{vt+1}, v{vt+2}
    v_lshlrev_b32 v{vt+1}, 4, v{vt+1}
    ''')
    if perm:
        a(f'''
        v_and_b32 v{vt+2}, 4, v{vt}
        v_add_u32 v{vt}, v{vt}, v{vt+2}
        s_and_b32 s{s_off}, s3, 1
        s_lshl_b32 s{s_off}, s{s_off}, 4
        s_lshr_b32 s{s_step}, s3, 1
        s_lshl_b32 s{s_step}, s{s_step}, 2
        s_add_u32 s{s_off}, s{s_off}, s{s_step}
        ''')
    else:
        a(f's_lshl_b32 s{s_off}, s3, 3')
    a(f'''
    v_mul_lo_u32 v{vt}, v{vt}, s{sP}
    v_add_u32 v{vo}, v{vt}, v{vt+1}
    s_mul_i32 s{s_off}, s{s_off}, s{sP}
    s_lshl_b32 s{s_step}, s{sP}, 5
    s_movk_i32 s{s_4k}, 0x1000
    s_lshl_b32 m0, s3, 10
    ''')
    for i in range(18):
        a(f'buffer_load_dwordx4 v{vo}, {sr(srdw)}, s{s_off} offen lds')
        if i < 17:
            a(f's_add_u32 m0, m0, s{s_4k}\ns_add_u32 s{s_off}, s{s_off}, s{s_step}')

def tr_addr(a, va, vt, ntiles=4):
    a(f'''
    v_lshrrev_b32 v{vt}, 2, v1
    v_and_b32 v{vt+1}, 6, v{vt}
    v_bfe_u32 v{vt+2}, v1, 1, 1
    v_xor_b32 v{vt+1}, v{vt+1}, v{vt+2}
    v_lshlrev_b32 v{vt+1}, 4, v{vt+1}
    v_lshl_add_u32 v{vt+1}, v{vt}, 7, v{vt+1}
    v_and_b32 v{vt+2}, 1, v1
    v_lshl_add_u32 v{va}, v{vt+2}, 3, v{vt+1}
    ''')
    for t in range(1, ntiles):
        a(f'v_xor_b32 v{va+t}, {32*t}, v{va}')

def reduce_g(a, x, t):
    a(f'''
    v_mov_b32 v{t}, v{x}
    v_permlane32_swap_b32 v{t}, v{x}
    v_add_f32 v{x}, v{x}, v{t}
    v_mov_b32 v{t}, v{x}
    v_permlane16_swap_b32 v{t}, v{x}
    v_add_f32 v{x}, v{x}, v{t}
    ''')

def layernorm(a, XB, T, later):
    s1, s2, one = T, T + 2, T + 4
    a(f'v_mov_b32 v{one}, 0x3f803f80')
    for i in range(4):
        a(f'v_mov_b32 v{T+i}, 0')
    for ks in range(18):
        if ks % 3 == 0:
            a(f's_waitcnt vmcnt({min(63, later + 17 - (ks + 2))})')
        for r in range(4):
            x = XB + 4 * ks + r
            a(f'v_dot2c_f32_bf16 v{s1 + r % 2}, v{one}, v{x}')
            a(f'v_dot2c_f32_bf16 v{s2 + r % 2}, v{x}, v{x}')
    a(f'v_add_f32 v{s1}, v{s1}, v{s1+1}\nv_add_f32 v{s2}, v{s2}, v{s2+1}')
    reduce_g(a, s1, T + 5)
    reduce_g(a, s2, T + 5)
    inv = f2u(1.0 / D)
    rs, nb = T + 6, T + 8
    a(f'''
    v_mul_f32 v{s1}, {inv:#x}, v{s1}
    v_mul_f32 v{s2}, {inv:#x}, v{s2}
    v_fma_f32 v{s2}, -v{s1}, v{s1}, v{s2}
    v_max_f32 v{s2}, 0, v{s2}
    v_add_f32 v{s2}, {f2u(1e-5):#x}, v{s2}
    v_rsq_f32 v{rs}, v{s2}
    v_mul_f32 v{nb}, v{s1}, v{rs}
    v_sub_f32 v{nb}, 0, v{nb}
    v_mov_b32 v{rs+1}, v{rs}
    v_mov_b32 v{nb+1}, v{nb}
    ''')
    for i in range(0, 72, 2):
        x0, x1 = XB + i, XB + i + 1
        t0, t1 = T, T + 2
        a(f'''
        v_lshlrev_b32 v{t0}, 16, v{x0}
        v_and_b32 v{t0+1}, 0xffff0000, v{x0}
        v_lshlrev_b32 v{t1}, 16, v{x1}
        v_and_b32 v{t1+1}, 0xffff0000, v{x1}
        v_pk_fma_f32 v[{t0}:{t0+1}], v[{t0}:{t0+1}], v[{rs}:{rs+1}], v[{nb}:{nb+1}]
        v_pk_fma_f32 v[{t1}:{t1+1}], v[{t1}:{t1+1}], v[{rs}:{rs+1}], v[{nb}:{nb+1}]
        v_cvt_pk_bf16_f32 v{x0}, v{t0}, v{t0+1}
        v_cvt_pk_bf16_f32 v{x1}, v{t1}, v{t1+1}
        ''')

def gelu4(x, t, dst, vA, sB):
    L = []
    for i in range(4): L.append(f'v_mul_f32 v{t+i}, v{x+i}, v{x+i}')
    for i in range(4): L.append(f'v_fma_f32 v{t+i}, v{t+i}, s{sB}, v{vA}')
    for i in range(4): L.append(f'v_mul_f32 v{t+i}, v{x+i}, v{t+i}')
    for i in range(4): L.append(f'v_exp_f32 v{t+i}, v{t+i}')
    for i in range(4): L.append(f'v_add_f32 v{t+i}, 1.0, v{t+i}')
    for i in range(4): L.append(f'v_rcp_f32 v{t+i}, v{t+i}')
    for i in range(4): L.append(f'v_mul_f32 v{t+i}, v{x+i}, v{t+i}')
    L.append(f'v_cvt_pk_bf16_f32 v{dst}, v{t}, v{t+1}')
    L.append(f'v_cvt_pk_bf16_f32 v{dst+1}, v{t+2}, v{t+3}')
    return L

def gemm_core(a, NS, XB, ACC, AF, VA):
    items = [(ks, t) for ks in range(18) for t in range(4)]
    PD = 6
    def rd(i):
        ks, t = items[i]
        if ks == 9 and t == 0:
            for tt in range(4):
                a(f'v_add_u32 v{VA+tt}, {9*4096}, v{VA+tt}')
        off = (ks % 9) * 4096
        r = AF + 4 * (i % 8)
        a(f'ds_read_b64_tr_b16 v[{r}:{r+1}], v{VA+t} offset:{off}')
        a(f'ds_read_b64_tr_b16 v[{r+2}:{r+3}], v{VA+t} offset:{off+2048}')
    for i in range(PD):
        rd(i)
    n = len(items)
    for i in range(n):
        if i + PD < n:
            rd(i + PD)
        a(f's_waitcnt lgkmcnt({2*min(PD, n-1-i)})')
        ks, t = items[i]
        r = AF + 4 * (i % 8)
        for ns in range(NS):
            c = ACC + 4 * (t * NS + ns)
            cs = '0' if ks == 0 else vr(c)
            a(f'v_mfma_f32_16x16x32_bf16 {vr(c)}, {vr(r)}, {vr(XB + 72*ns + 4*ks)}, {cs}')

def k1(a):
    N_G1, N_UT, N_PP = 288, 72, 144
    name = 'k1_kernel'
    prologue(a, name, N_G1 + N_UT + N_PP)
    a(f'''
    s_cmp_ge_u32 s2, {N_G1 + N_UT}
    s_cbranch_scc1 k1_prepass
    s_cmp_ge_u32 s2, {N_G1}
    s_cbranch_scc1 k1_ut
    ''')
    XB, ACC, AF, VA, T = 16, 88, 104, 136, 140
    a(f'''
    s_and_b32 s4, s2, 7
    s_lshl_b32 s4, s4, 2
    s_bfe_u32 s5, s2, {(2 << 16) | 3}
    s_add_u32 s4, s4, s5
    s_lshr_b32 s5, s2, 5
    ''')
    srd(a, 48, P_Q, 0, TB)
    a(f'''
    s_lshl_b32 s6, s4, 6
    s_lshl_b32 s7, s3, 4
    s_add_u32 s6, s6, s7
    v_and_b32 v2, 15, v1
    v_add_u32 v2, s6, v2
    v_mul_u32_u24 v2, 1152, v2
    v_lshrrev_b32 v3, 4, v1
    v_lshl_add_u32 v2, v3, 4, v2
    ''')
    for ks in range(18):
        a(f'buffer_load_dwordx4 {vr(XB+4*ks)}, v2, s[48:51], 0 offen offset:{64*ks}')
    a(f's_lshl_b32 s6, s5, 7\ns_sub_u32 s7, {D*D*2}, s6')
    srd(a, 52, P_W1, 's6', 's7')
    a('s_movk_i32 s8, 1152')
    wtile_issue(a, 52, 8, True, 4, 5, 9, 10, 11)
    tr_addr(a, VA, 5)
    layernorm(a, XB, T, 18)
    a('s_waitcnt vmcnt(0)\ns_barrier')
    gemm_core(a, 1, XB, ACC, AF, VA)
    srd(a, 56, P_WS, WS_H, TB)
    a(f'''
    v_mov_b32 v4, {f2u(GA):#x}
    s_mov_b32 s12, {f2u(GB):#x}
    s_mul_i32 s6, s4, 73728
    s_lshl_b32 s7, s5, 13
    s_add_u32 s6, s6, s7
    s_lshl_b32 s7, s3, 10
    s_add_u32 s6, s6, s7
    v_lshlrev_b32 v5, 4, v1
    ''')
    for p in range(2):
        for h in range(2):
            for ins in gelu4(ACC + 4 * (2 * p + h), T, XB + 4 * p + 2 * h, 4, 12):
                a(ins)
        if p == 1:
            a('s_add_u32 s6, s6, 4096')
        a(f'buffer_store_dwordx4 {vr(XB+4*p)}, v5, s[56:59], s6 offen')
    a('s_endpgm')

    a.label('k1_ut'); a.barrier_hist()
    KR, VRR, SKR, SKU, KU, VU, OUT = 16, 60, 92, 108, 140, 162, 178
    a(f'''
    s_sub_u32 s4, s2, {N_G1}
    s_lshl_b32 s4, s4, 2
    s_add_u32 s4, s4, s3
    ''')
    sdiv(a, 5, 4, 9, 287)
    a('s_mul_i32 s6, s5, 9\ns_sub_u32 s6, s4, s6')
    srd(a, 48, P_K, 0, TB)
    srd(a, 52, P_V, 0, TB)
    srd(a, 56, P_SK, 0, D * 8)
    srd(a, 60, P_WS, WS_UR, TB)
    a(f'''
    v_lshrrev_b32 v2, 3, v1
    v_lshlrev_b32 v2, 3, v2
    s_lshl_b32 s7, s5, 6
    v_add_u32 v2, s7, v2                 ; t_base
    v_and_b32 v3, 7, v1
    s_lshl_b32 s7, s6, 3
    v_add_u32 v3, s7, v3
    v_mul_u32_u24 v4, 1152, v2
    v_lshl_add_u32 v4, v3, 4, v4         ; voffB
    v_subrev_u32 v5, {3*1152}, v4        ; voffA
    v_add_u32 v6, {4*1152}, v4           ; voffC
    v_lshlrev_b32 v7, 6, v3
    ''')
    for i in range(4):
        a(f'buffer_load_dwordx4 {vr(SKR+4*i)}, v7, s[56:59], 0 offen offset:{16*i}')
    for i in range(11):
        vo, o = (5, i) if i < 3 else ((4, i - 3) if i < 7 else (6, i - 7))
        a(f'buffer_load_dwordx4 {vr(KR+4*i)}, v{vo}, s[48:51], 0 offen offset:{1152*o}')
    for i in range(8):
        vo, o = (4, i) if i < 4 else (6, i - 4)
        a(f'buffer_load_dwordx4 {vr(VRR+4*i)}, v{vo}, s[52:55], 0 offen offset:{1152*o}')
    a(f'''
    v_lshlrev_b32 v8, 15, v3
    v_lshlrev_b32 v9, 1, v2
    v_sub_u32 v8, v8, v9
    v_add_u32 v8, 4080, v8
    s_waitcnt vmcnt(19)
    ''')
    for i in range(16):
        a(f'v_lshlrev_b32 v{SKU+2*i}, 16, v{SKR+i}\nv_and_b32 v{SKU+2*i+1}, 0xffff0000, v{SKR+i}')
    a('s_waitcnt vmcnt(0)')
    for p in range(4):
        for i in range(11):
            a(f'v_lshlrev_b32 v{KU+i}, 16, v{KR+4*i+p}\nv_and_b32 v{KU+11+i}, 0xffff0000, v{KR+4*i+p}')
        for i in range(8):
            a(f'v_lshlrev_b32 v{VU+i}, 16, v{VRR+4*i+p}\nv_and_b32 v{VU+8+i}, 0xffff0000, v{VRR+4*i+p}')
        for h in range(2):
            ch = 2 * p + h
            ku = KU + 11 * h; vu = VU + 8 * h; sk = SKU + 4 * ch
            tmp = OUT + 8
            for t in range(8):
                a(f'v_mul_f32 v{tmp+t}, v{ku+t+3}, v{sk}')
            for j in range(1, 4):
                for t in range(8):
                    a(f'v_fmac_f32 v{tmp+t}, v{ku+t+3-j}, v{sk+j}')
            for t in range(8):
                a(f'v_mul_f32 v{tmp+t}, v{tmp+t}, v{vu+t}')
            o = OUT + 4 * h
            for i in range(4):
                a(f'v_cvt_pk_bf16_f32 v{o+i}, v{tmp+7-2*i}, v{tmp+6-2*i}')
            a(f's_movk_i32 s7, {4096*ch}')
            a(f'buffer_store_dwordx4 {vr(o)}, v8, s[60:63], s7 offen')
    a('s_endpgm')

    a.label('k1_prepass'); a.barrier_hist()
    a(f'''
    s_sub_u32 s4, s2, {N_G1 + N_UT}
    s_cmp_ge_u32 s4, 72
    s_cbranch_scc1 k1_pp4
    ''')
    a(f's_lshl_b32 s6, s4, 7\ns_sub_u32 s7, {D*F*2}, s6')
    srd(a, 52, P_W3, 's6', 's7')
    a('s_movk_i32 s8, 9216\ns_lshl_b32 s5, s4, 2\ns_add_u32 s5, s5, s3')
    sdiv(a, 6, 5, 36, 287)
    a('s_mul_i32 s7, s6, 36\ns_sub_u32 s5, s5, s7')
    sdiv(a, 7, 5, 12, 35)
    a(f'''
    s_mul_i32 s12, s7, 12
    s_sub_u32 s5, s5, s12                ; u
    s_lshr_b32 s12, s5, 1                ; wv (u<8)
    s_and_b32 s13, s5, 1                 ; tt
    s_sub_u32 s14, s5, 8
    s_cmp_lt_u32 s5, 8
    s_cselect_b32 s12, s12, s14
    s_cselect_b32 s13, s13, 2
    s_mul_i32 s7, s7, 54
    s_add_u32 s13, s13, s7
    s_movk_i32 s15, 3072
    s_branch k1_pp_common
    ''')
    a.label('k1_pp4'); a.barrier_hist()
    a('s_sub_u32 s4, s4, 72')
    sdiv(a, 6, 4, 9, 71)
    a(f'''
    s_mul_i32 s7, s6, 9
    s_sub_u32 s4, s4, s7                 ; ct
    s_mul_i32 s7, s6, {576*1152}
    s_lshl_b32 s5, s4, 7
    s_add_u32 s7, s7, s5
    s_sub_u32 s5, {D*F*2}, s7
    ''')
    srd(a, 52, P_W4, 's7', 's5')
    a(f'''
    s_movk_i32 s8, 1152
    s_lshl_b32 s5, s4, 2
    s_add_u32 s5, s5, s3                 ; T
    s_lshr_b32 s12, s5, 3
    s_and_b32 s13, s5, 7
    s_sub_u32 s14, s5, 32
    s_cmp_lt_u32 s5, 32
    s_cselect_b32 s12, s12, s14
    s_cselect_b32 s13, s13, 8
    s_add_u32 s13, s13, 162
    s_movk_i32 s15, 9216
    ''')
    a.label('k1_pp_common'); a.barrier_hist()
    a(f'''
    s_lshl_b32 s6, s6, 2
    s_add_u32 s6, s6, s12
    s_mul_i32 s6, s6, {WP_WAVE}
    s_lshl_b32 s13, s13, 10
    s_add_u32 s46, s6, s13
    ''')
    wtile_issue(a, 52, 8, False, 4, 5, 9, 10, 11)
    tr_addr(a, 8, 5, 1)
    srd(a, 56, P_WS, WS_WP, 32 * WP_WAVE)
    a(f'''
    s_lshl_b32 s7, s3, 5
    v_xor_b32 v8, s7, v8
    v_add_u32 v9, {9*4096}, v8
    v_lshlrev_b32 v10, 4, v1
    s_waitcnt vmcnt(0)
    s_barrier
    ''')
    for half in range(3):
        for i in range(6):
            ks = half * 6 + i
            r = 16 + 4 * ks
            va = 8 if ks < 9 else 9
            off = (ks % 9) * 4096
            a(f'ds_read_b64_tr_b16 v[{r}:{r+1}], v{va} offset:{off}')
            a(f'ds_read_b64_tr_b16 v[{r+2}:{r+3}], v{va} offset:{off+2048}')
        for i in range(6):
            ks = half * 6 + i
            r = 16 + 4 * ks
            a(f's_waitcnt lgkmcnt({2*(5-i)})')
            a(f'buffer_store_dwordx4 {vr(r)}, v10, s[56:59], s46 offen')
            a('s_add_u32 s46, s46, s15')
    a.label(name + '_exit')
    a('s_endpgm')
    return dict(name=name, grid=N_G1 + N_UT + N_PP, block=256, lds=73728, vgpr=200, acc=200)

def k2(a):
    N_CV, N_G2, N_GT = 288, 144, 32
    name = 'k2_kernel'
    prologue(a, name, N_CV + N_G2 + N_GT)
    a(f'''
    s_cmp_ge_u32 s2, {N_CV + N_G2}
    s_cbranch_scc1 k2_gate
    s_cmp_ge_u32 s2, {N_CV}
    s_cbranch_scc1 k2_gemm
    ''')
    CHB = 40880; URO = 33280
    a(f'''
    s_lshr_b32 s5, s3, 1
    s_lshl_b32 s4, s2, 1
    s_add_u32 s4, s4, s5                 ; ch
    s_and_b32 s6, s3, 1                  ; hq
    s_mul_i32 s5, s5, {CHB}
    s_lshl_b32 s7, s4, 12
    ''')
    srd(a, 48, P_SSMK, 's7', 4096)
    a(f's_add_u32 s8, s7, {WS_UR}')
    srd(a, 52, P_WS, 's8', 4096)
    a(f's_add_u32 s8, s7, {WS_Z}')
    srd(a, 56, P_WS, 's8', 4096)
    srd(a, 60, P_SSMD, 0, D * 2)
    a(f'''
    v_and_b32 v2, 127, v0                ; lane128
    v_lshlrev_b32 v3, 4, v2              ; lane128*16
    v_subrev_u32 v4, 16, v3
    s_lshl_b32 s8, s4, 1
    v_mov_b32 v5, s8
    ''')
    DD = [16, 48]
    for it in range(2):
        a(f'buffer_load_dwordx4 {vr(DD[it])}, v4, s[48:51], 0 offen offset:{2048*it}')
        a(f'buffer_load_dwordx4 {vr(DD[it]+4)}, v4, s[48:51], 0 offen offset:{2048*it+16}')
    for it in range(2):
        a(f'buffer_load_dwordx4 {vr(80+4*it)}, v3, s[52:55], 0 offen offset:{2048*it}')
    a('buffer_load_ushort v12, v5, s[60:63], 0 offen')
    a(f'''
    v_mov_b32 v88, 0
    v_mov_b32 v89, 0
    v_mov_b32 v90, 0
    v_mov_b32 v91, 0
    v_and_b32 v6, 7, v1
    v_mul_u32_u24 v6, 4160, v6
    v_lshrrev_b32 v7, 3, v1
    v_min_u32 v7, 2, v7
    v_lshl_add_u32 v6, v7, 4, v6
    v_add_u32 v6, s5, v6
    ds_write_b128 v6, v[88:91]
    v_add_u32 v7, s5, v3
    ds_write_b128 v7, v[88:91] offset:{URO + 5120}
    v_min_u32 v8, {26*16}, v3
    v_add_u32 v8, s5, v8
    ds_write_b128 v8, v[88:91] offset:{URO + 5120 + 2048}
    ''')
    for it in range(2):
        d = DD[it]
        e, o0, o1 = d + 8, d + 14, d + 22
        a(f's_waitcnt vmcnt({5 - 2*it})')
        for i in range(6):
            a(f'v_mov_b32 v{e+i}, v{d+1+i}')
        for i in range(7):
            a(f'v_alignbit_b32 v{o0+i}, v{d+i+1}, v{d+i}, 16')
        for i in range(6):
            a(f'v_alignbit_b32 v{o1+i}, v{d+i+2}, v{d+i+1}, 16')
        src = {0: o0, 1: e, 2: o1, 3: d + 2, 4: o0 + 2, 5: e + 2, 6: o1 + 2, 7: d + 4}
        for ph in range(8):
            a(f'ds_write_b128 v7, {vr(src[ph])} offset:{ph*4160 + 48 + 2048*it}')
    a(f'''
    v_lshrrev_b32 v8, 2, v2
    v_lshl_add_u32 v8, v8, 4, v7
    s_waitcnt vmcnt(1)
    ds_write_b128 v8, v[80:83] offset:{URO}
    ds_write_b128 v8, v[84:87] offset:{URO + 2560}
    ''')
    a(f'''
    v_and_b32 v9, 7, v1
    v_mul_u32_u24 v9, 4160, v9
    v_and_b32 v10, 24, v1
    v_lshl_add_u32 v9, v10, 1, v9
    v_lshrrev_b32 v10, 5, v1
    v_lshl_add_u32 v9, v10, 4, v9
    s_lshl_b32 s8, s6, 10
    s_add_u32 s8, s8, s5
    v_add_u32 v9, s8, v9                 ; vA
    v_and_b32 v11, 31, v1
    v_sub_u32 v11, 31, v11
    v_mul_u32_u24 v11, 80, v11           ; 80*(31-i)
    v_lshl_add_u32 v10, v10, 4, v11
    s_mul_i32 s8, s6, 1280
    s_add_u32 s8, s8, s5
    v_add_u32 v10, s8, v10               ; vB (B' ; B = +2560)
    s_waitcnt lgkmcnt(0)
    s_barrier
    ''')
    AC0, AC1, FR = 16, 32, 48
    def rd(q):
        r = FR + 16 * (q % 3)
        bo = URO + 80 * (q >> 1) + 32 * (q & 1)
        a(f'ds_read_b128 {vr(r)}, v9 offset:{32*q}')
        a(f'ds_read_b128 {vr(r+4)}, v10 offset:{bo+2560}')
        a(f'ds_read_b128 {vr(r+8)}, v9 offset:{32*q+2048}')
        a(f'ds_read_b128 {vr(r+12)}, v10 offset:{bo}')
    rd(0); rd(1)
    for q in range(32):
        if q + 2 < 32:
            rd(q + 2)
        a(f's_waitcnt lgkmcnt({4*min(2, 31-q)})')
        r = FR + 16 * (q % 3)
        c0 = '0' if q == 0 else vr(AC0, 16)
        c1 = '0' if q == 0 else vr(AC1, 16)
        a(f'v_mfma_f32_32x32x16_bf16 {vr(AC0,16)}, {vr(r)}, {vr(r+4)}, {c0}')
        a(f'v_mfma_f32_32x32x16_bf16 {vr(AC1,16)}, {vr(r+8)}, {vr(r+4)}, {c1}')
        a(f'v_mfma_f32_32x32x16_bf16 {vr(AC1,16)}, {vr(r)}, {vr(r+12)}, {vr(AC1,16)}')
    a(f'''
    s_cmp_eq_u32 s6, 0
    s_cbranch_scc1 k2_noswap
    s_nop 7
    s_nop 7
    ''')
    for i in range(16):
        a(f'v_swap_b32 v{AC0+i}, v{AC1+i}')
    a.label('k2_noswap')
    a(f'''
    s_nop 7
    s_nop 7
    s_lshl_b32 s8, s6, 12
    s_add_u32 s8, s8, s5
    v_lshlrev_b32 v2, 4, v1
    v_add_u32 v3, s8, v2
    s_xor_b32 s9, s6, 1
    s_lshl_b32 s9, s9, 12
    s_add_u32 s9, s9, s5
    v_add_u32 v4, s9, v2
    s_barrier
    ''')
    for i in range(4):
        a(f'ds_write_b128 v3, {vr(AC1+4*i)} offset:{1024*i}')
    a(f'''
    v_lshrrev_b32 v5, 5, v1
    v_lshlrev_b32 v5, 3, v5
    v_sub_u32 v5, v11, v5
    s_mul_i32 s8, s6, 2560
    s_sub_u32 s8, s5, s8
    s_add_u32 s8, s8, {URO + 2560 + 8}
    v_add_u32 v5, s8, v5
    ''')
    for g4 in range(4):
        a(f'ds_read_b64 v[{64+2*g4}:{65+2*g4}], v5 offset:{16*(3-g4)}')
    a('s_waitcnt lgkmcnt(0)\ns_barrier')
    for i in range(4):
        a(f'ds_read_b128 {vr(AC1+4*i)}, v4 offset:{1024*i}')
    a(f'''
    s_waitcnt vmcnt(0)
    v_lshlrev_b32 v12, 16, v12           ; D as f32
    v_and_b32 v6, 31, v1
    v_lshlrev_b32 v6, 6, v6
    v_lshrrev_b32 v7, 5, v1
    v_lshl_add_u32 v6, v7, 3, v6
    s_lshl_b32 s8, s6, 11
    s_waitcnt lgkmcnt(0)
    ''')
    for g4 in range(4):
        u = 64 + 2 * g4
        t = 72
        a(f'''
        v_and_b32 v{t}, 0xffff0000, v{u+1}
        v_lshlrev_b32 v{t+1}, 16, v{u+1}
        v_and_b32 v{t+2}, 0xffff0000, v{u}
        v_lshlrev_b32 v{t+3}, 16, v{u}
        ''')
        for e in range(4):
            a(f'v_add_f32 v{AC0+4*g4+e}, v{AC0+4*g4+e}, v{AC1+4*g4+e}')
        for e in range(4):
            a(f'v_fmac_f32 v{AC0+4*g4+e}, v{t+e}, v12')
        o = 76 + 2 * g4
        a(f'v_cvt_pk_bf16_f32 v{o}, v{AC0+4*g4}, v{AC0+4*g4+1}')
        a(f'v_cvt_pk_bf16_f32 v{o+1}, v{AC0+4*g4+2}, v{AC0+4*g4+3}')
        a(f'buffer_store_dwordx2 v[{o}:{o+1}], v6, s[56:59], s8 offen offset:{16*g4}')
    a('s_endpgm')

    a.label('k2_gemm'); a.barrier_hist()
    XB, ACC, AF, VA, XR, VO = 16, 160, 192, 224, 228, 244
    a(f'''
    s_sub_u32 s13, s2, {N_CV}
    s_and_b32 s4, s13, 7
    s_lshl_b32 s4, s4, 1
    s_bfe_u32 s5, s13, {(1 << 16) | 3}
    s_add_u32 s4, s4, s5                 ; rb128
    s_lshr_b32 s5, s13, 4                ; ct
    ''')
    srd(a, 48, P_WS, WS_H, TB)
    a(f'''
    s_lshl_b32 s6, s4, 7
    s_lshl_b32 s7, s3, 5
    s_add_u32 s6, s6, s7
    v_and_b32 v2, 15, v1
    v_add_u32 v2, s6, v2
    v_lshrrev_b32 v3, 4, v1
    v_lshlrev_b32 v3, 8, v3              ; g*256
    s_mov_b32 s14, 73728
    ''')
    delta = [-1, 1, -2, 2]
    for ns in range(2):
        for gm in range(4):
            vo = VO + 4 * ns + gm
            a(f'''
            v_add_u32 v4, {16*ns + delta[gm]}, v2
            v_ashrrev_i32 v5, 6, v4
            v_mul_lo_u32 v5, v5, s14
            v_bfe_u32 v6, v4, 4, 2
            v_lshl_add_u32 v5, v6, 10, v5
            v_and_b32 v6, 15, v4
            v_lshl_add_u32 v5, v6, 4, v5
            v_add_u32 v{vo}, v5, v3
            ''')
    a('s_mov_b32 s6, 0')
    nld = 0
    for b in range(18):
        g0, g1 = (2 * b) // 9, (2 * b + 1) // 9
        for ns in range(2):
            r = XB + 72 * ns + 4 * b
            if g0 == g1:
                a(f'buffer_load_dwordx4 {vr(r)}, v{VO+4*ns+g0}, s[48:51], s6 offen'); nld += 1
            else:
                a(f'buffer_load_dwordx2 {vr(r,2)}, v{VO+4*ns+g0}, s[48:51], s6 offen')
                a(f'buffer_load_dwordx2 {vr(r+2,2)}, v{VO+4*ns+g1}, s[48:51], s6 offen offset:8'); nld += 2
        if b < 17:
            a('s_add_u32 s6, s6, 0x1000')
    a(f's_lshl_b32 s6, s5, 7\ns_sub_u32 s7, {D*D*2}, s6')
    srd(a, 52, P_W2, 's6', 's7')
    a('s_movk_i32 s8, 1152')
    wtile_issue(a, 52, 8, False, 4, 5, 9, 10, 11)
    srd(a, 56, P_Q, 0, TB)
    a(f'''
    v_mul_u32_u24 v4, 1152, v2
    v_lshrrev_b32 v5, 5, v3
    v_add3_u32 v4, v4, v5, s6
    v_add_u32 v5, {16*1152}, v4
    s_waitcnt vmcnt(40)
    ''')
    for ns in range(2):
        for t in range(4):
            r = XR + 2 * (t * 2 + ns)
            a(f'buffer_load_dwordx2 {vr(r,2)}, v{4+ns}, s[56:59], 0 offen offset:{32*t}')
    tr_addr(a, VA, 6)
    a('s_waitcnt vmcnt(0)\ns_barrier')
    gemm_core(a, 2, XB, ACC, AF, VA)
    srd(a, 60, P_WS, WS_X1, TB)
    a(f'''
    s_mul_i32 s6, s4, {2*73728}
    s_lshr_b32 s7, s3, 1
    s_mul_i32 s7, s7, 73728
    s_add_u32 s6, s6, s7
    s_and_b32 s7, s3, 1
    s_lshl_b32 s7, s7, 11
    s_add_u32 s6, s6, s7
    s_lshl_b32 s7, s5, 13
    s_add_u32 s6, s6, s7
    v_lshlrev_b32 v5, 4, v1
    ''')
    for p in range(2):
        for ns in range(2):
            o = XB + 4 * (2 * p + ns)
            for h in range(2):
                t = 2 * p + h
                c = ACC + 4 * (t * 2 + ns); x = XR + 2 * (t * 2 + ns)
                a(f'''
                v_lshlrev_b32 v6, 16, v{x}
                v_and_b32 v7, 0xffff0000, v{x}
                v_lshlrev_b32 v8, 16, v{x+1}
                v_and_b32 v9, 0xffff0000, v{x+1}
                v_add_f32 v6, v6, v{c}
                v_add_f32 v7, v7, v{c+1}
                v_add_f32 v8, v8, v{c+2}
                v_add_f32 v9, v9, v{c+3}
                v_cvt_pk_bf16_f32 v{o+2*h}, v6, v7
                v_cvt_pk_bf16_f32 v{o+2*h+1}, v8, v9
                ''')
            a(f'buffer_store_dwordx4 {vr(o)}, v5, s[60:63], s6 offen offset:{1024*ns}')
        if p == 0:
            a('s_add_u32 s6, s6, 4096')
    a('s_endpgm')

    a.label('k2_gate'); a.barrier_hist()
    srd(a, 48, P_Q, 0, TB)
    srd(a, 52, P_GW, 0, D * 2)
    srd(a, 56, P_WS, WS_G, S * 4)
    a(f'''
    s_sub_u32 s4, s2, {N_CV + N_G2}
    s_lshl_b32 s4, s4, 6
    s_lshl_b32 s5, s3, 4
    s_add_u32 s4, s4, s5
    v_and_b32 v2, 15, v1
    v_add_u32 v2, s4, v2                 ; row
    v_lshrrev_b32 v3, 4, v1
    v_lshlrev_b32 v3, 4, v3
    v_mul_u32_u24 v4, 1152, v2
    v_add_u32 v4, v4, v3
    v_mov_b32 v6, 0
    v_mov_b32 v7, 0
    ''')
    for ks in range(18):
        a(f'buffer_load_dwordx4 {vr(16+8*ks)}, v4, s[48:51], 0 offen offset:{64*ks}')
        a(f'buffer_load_dwordx4 {vr(20+8*ks)}, v3, s[52:55], 0 offen offset:{64*ks}')
    for ks in range(18):
        if ks % 3 == 0:
            a(f's_waitcnt vmcnt({2*(17-ks-2)})')
        for r in range(4):
            a(f'v_dot2c_f32_bf16 v{6 + r % 2}, v{16+8*ks+r}, v{20+8*ks+r}')
    a('v_add_f32 v6, v6, v7')
    reduce_g(a, 6, 7)
    a(f'''
    v_mul_f32 v6, {f2u(-math.log2(math.e)):#x}, v6
    v_exp_f32 v6, v6
    v_add_f32 v6, 1.0, v6
    v_rcp_f32 v6, v6
    v_lshlrev_b32 v2, 2, v2
    s_nop 0
    buffer_store_dword v6, v2, s[56:59], 0 offen
    ''')
    a.label(name + '_exit')
    a('s_endpgm')
    return dict(name=name, grid=N_CV + N_G2 + N_GT, block=256, lds=81760, vgpr=256, acc=256)

def k3(a):
    name = 'k3_kernel'
    prologue(a, name, 256)
    R = 28
    HB = 73728
    ACC3, BF, T, GD = 16, 160, 192, 204
    VX = [2, 3, 4]; VH0, VH1, VA_ = 5, 6, 7
    XB = 16
    a(f'''
    s_and_b32 s4, s2, 7                  ; fs
    s_lshr_b32 s5, s2, 3                 ; rb
    v_lshlrev_b32 v2, 4, v1
    ''')
    srd(a, 48, P_WS, WS_X1, TB)
    a(f'''
    s_mul_i32 s6, s5, 73728
    s_lshl_b32 s7, s3, 10
    s_add_u32 s6, s6, s7
    ''')
    for b in range(18):
        a(f'buffer_load_dwordx4 {vr(XB+4*b)}, v2, s[48:51], s6 offen')
        if b < 17:
            a('s_add_u32 s6, s6, 0x1000')
    srd(a, 52, P_WS, WS_WP, 32 * WP_WAVE)
    a(f'''
    s_lshl_b32 s8, s4, 2
    s_add_u32 s8, s8, s3
    s_mul_i32 s8, s8, {WP_WAVE}
    s_movk_i32 s9, 0x1000
    ''')
    def wld(i):
        L = []
        if i % 4 == 0 and i > 0:
            L.append('s_add_u32 s8, s8, s9')
        r = 144 + 4 * (i % R)
        L.append(f'buffer_load_dwordx4 {ar(r)}, v2, s[52:55], s8 offen offset:{1024*(i%4)}')
        return L
    for i in range(R):
        for x in wld(i): a(x)
    layernorm(a, XB, T, R)
    a(f'''
    v_add_u32 v3, 0x10000, v2
    v_add_u32 v4, 0x20000, v2
    v_add_u32 v8, s7, v2
    v_add_u32 v9, 0x10000, v8
    ''')
    for b in range(18):
        vb, off = (8, b * 4096) if b < 16 else (9, b * 4096 - 65536)
        a(f'ds_write_b128 v{vb}, {vr(XB+4*b)} offset:{off}')
    a(f'''
    s_lshl_b32 s10, s3, 12
    s_add_u32 s10, s10, {HB}
    v_add_u32 v{VH0}, s10, v2
    s_lshr_b32 s10, s3, 1
    s_lshl_b32 s10, s10, 12
    s_and_b32 s11, s3, 1
    s_lshl_b32 s11, s11, 3
    s_add_u32 s10, s10, s11
    s_add_u32 s10, s10, {HB + 4*4096}
    v_add_u32 v{VH1}, s10, v2
    v_mov_b32 v{VA_}, {f2u(GA):#x}
    s_mov_b32 s12, {f2u(GB):#x}
    s_waitcnt lgkmcnt(0)
    s_barrier
    ''')
    def lds_rd(r, addr):
        k = addr >> 16
        return f'ds_read_b128 {vr(r)}, v{VX[k]} offset:{addr & 0xffff}'
    steps = [(3, c, ks) for c in range(3) for ks in range(18)] + [(4, 0, ks) for ks in range(18)]
    def bfrag_reads(si):
        ph, c, ks = steps[si]
        base = 0 if ph == 3 else HB
        return [lds_rd(BF + 16 * (si % 2) + 4 * st, base + ks * 4096 + st * 1024) for st in range(4)]
    def gelu_chunk(c):
        L = []
        for st in range(4):
            for tt in range(3):
                x = ACC3 + 48 * c + 4 * (tt * 4 + st)
                dst = GD + 2 * tt
                L += gelu4(x, T + 4 * (tt % 2), dst, VA_, 12)
                if tt == 1:
                    L.append(f'ds_write_b128 v{VH0}, {vr(GD)} offset:{c*24576 + st*1024}')
                if tt == 2:
                    L.append(f'ds_write_b64 v{VH1}, {vr(GD+4,2)} offset:{c*24576 + st*1024}')
        return L
    win = {0: (18, 50), 1: (50, 58), 2: (58, 64)}
    win = {0: (18, 40), 1: (40, 57), 2: (57, 64)}
    fill = {}
    nm = lambda si: 12 if steps[si][0] == 3 else 36
    for c, (s0, s1) in win.items():
        ops = gelu_chunk(c)
        tot = sum(nm(si) for si in range(s0, s1))
        pos = 0; acc = 0
        for si in range(s0, s1):
            acc += nm(si)
            upto = (len(ops) * acc + tot - 1) // tot
            fill[si] = ops[pos:upto]; pos = upto
    barrier_after = {s1 - 1 for (s0, s1) in win.values()}
    for x in bfrag_reads(0): a(x)
    fi = 0
    for si, (ph, c, ks) in enumerate(steps):
        nt = 3 if ph == 3 else 9
        fl = list(fill.get(si, []))
        nds_fill = sum(1 for x in fl if x.startswith('ds_'))
        a('s_waitcnt lgkmcnt(0)')
        nxt = bfrag_reads(si + 1) if si + 1 < len(steps) else []
        outstanding_after = min(R, 324 - fi)
        a(f's_waitcnt vmcnt({max(0, outstanding_after - nt)})')
        mf = []
        for tt in range(nt):
            w = 144 + 4 * ((fi + tt) % R)
            for st in range(4):
                b = BF + 16 * (si % 2) + 4 * st
                if ph == 3:
                    d = vr(ACC3 + 48 * c + 4 * (tt * 4 + st))
                else:
                    d = ar(4 * (tt * 4 + st))
                cs = '0' if ks == 0 else d
                extra = []
                if st == 3 and fi + tt + R < 324:
                    extra = wld(fi + tt + R)
                mf.append((f'v_mfma_f32_16x16x32_bf16 {d}, {ar(w)}, {vr(b)}, {cs}', extra))
        n = len(mf); pos = 0
        for i, (m, extra) in enumerate(mf):
            a(m)
            if i < len(nxt):
                a(nxt[i])
            for x in extra: a(x)
            upto = (len(fl) * (i + 1)) // n
            for x in fl[pos:upto]: a(x)
            pos = upto
        fi += nt
        if si in barrier_after:
            a('s_waitcnt lgkmcnt(0)\ns_barrier')
    srd(a, 56, P_WS, WS_PART, 8 * TB)
    a(f'''
    s_mul_i32 s6, s4, {TB}
    s_mul_i32 s7, s5, 73728
    s_add_u32 s6, s6, s7
    s_lshl_b32 s7, s3, 14
    s_add_u32 s7, s7, s6                 ; blocks 4w..
    s_lshr_b32 s10, s3, 1
    s_lshl_b32 s10, s10, 12
    s_add_u32 s10, s10, s11
    s_add_u32 s10, s10, s6
    s_add_u32 s10, s10, {16*4096}
    ''')
    k = 0
    for p in range(5):
        for st in range(4):
            t = 16 + 16 * (k % 4); o = t + 8; k += 1
            tts = [2 * p, 2 * p + 1] if p < 4 else [8]
            for h, tt in enumerate(tts):
                for e in range(4):
                    a(f'v_accvgpr_read_b32 v{t+4*h+e}, a{4*(tt*4+st)+e}')
            for h, tt in enumerate(tts):
                a(f'v_cvt_pk_bf16_f32 v{o+2*h}, v{t+4*h}, v{t+4*h+1}')
                a(f'v_cvt_pk_bf16_f32 v{o+2*h+1}, v{t+4*h+2}, v{t+4*h+3}')
            if p < 4:
                a(f'buffer_store_dwordx4 {vr(o)}, v2, s[56:59], s7 offen offset:{1024*st}')
            else:
                a(f'buffer_store_dwordx2 {vr(o,2)}, v2, s[56:59], s10 offen offset:{1024*st}')
        if p < 3:
            a('s_add_u32 s7, s7, s9')
    a.label(name + '_exit')
    a('s_endpgm')
    return dict(name=name, grid=256, block=256, lds=2 * 73728, vgpr=512, acc=256)

def k4(a):
    name = 'k4_kernel'
    prologue(a, name, 288)
    a('s_lshl_b32 s4, s2, 2\ns_add_u32 s4, s4, s3')
    sdiv(a, 5, 4, 18, 1151)
    a('s_mul_i32 s6, s5, 18\ns_sub_u32 s6, s4, s6')
    srd(a, 48, P_WS, WS_PART, 8 * TB)
    srd(a, 52, P_WS, WS_X1, TB)
    srd(a, 56, P_WS, WS_Z, TB)
    srd(a, 60, P_Q, 0, TB)
    srd(a, 64, P_OUT, 0, TB)
    srd(a, 68, P_WS, WS_G, S * 4)
    PR, XR, QR, ZR, ACC = 16, 80, 88, 96, 104
    a(f'''
    s_lshr_b32 s7, s5, 1
    s_mul_i32 s7, s7, 73728
    s_lshl_b32 s8, s6, 12
    s_add_u32 s7, s7, s8
    s_and_b32 s8, s5, 1
    s_lshl_b32 s8, s8, 11
    s_add_u32 s7, s7, s8
    v_lshlrev_b32 v2, 4, v1
    v_lshrrev_b32 v3, 2, v1
    v_lshlrev_b32 v4, 12, v3
    v_and_b32 v5, 3, v1
    v_lshl_add_u32 v4, v5, 4, v4
    s_lshl_b32 s8, s6, 17
    s_lshl_b32 s9, s5, 6
    s_add_u32 s8, s8, s9
    s_lshl_b32 s10, s3, 11
    s_mov_b32 m0, s10
    s_add_u32 s9, s8, 0x10000
    buffer_load_dwordx4 v4, s[56:59], s8 offen lds
    s_add_u32 m0, m0, 1024
    v_lshlrev_b32 v6, 6, v3
    buffer_load_dwordx4 v4, s[56:59], s9 offen lds
    v_lshl_add_u32 v6, v5, 3, v6
    v_add_u32 v6, s10, v6
    ''')
    for st in range(2):
        a(f'buffer_load_dwordx4 {vr(XR+4*st)}, v2, s[52:55], s7 offen offset:{1024*st}')
    for f in range(8):
        for st in range(2):
            a(f'buffer_load_dwordx4 {vr(PR+8*f+4*st)}, v2, s[48:51], s7 offen offset:{1024*st}')
        if f < 7:
            a(f's_add_u32 s7, s7, {TB}')
    a(f'''
    s_lshl_b32 s8, s5, 5
    v_and_b32 v7, 15, v1
    v_add_u32 v7, s8, v7
    v_lshlrev_b32 v8, 2, v7
    buffer_load_dword v10, v8, s[68:71], 0 offen
    buffer_load_dword v11, v8, s[68:71], 0 offen offset:64
    v_mul_u32_u24 v7, 1152, v7
    v_lshrrev_b32 v8, 4, v1
    v_lshl_add_u32 v7, v8, 3, v7
    s_lshl_b32 s8, s6, 6
    v_add_u32 v7, s8, v7
    v_add_u32 v8, {16*1152}, v7
    ''')
    for st in range(2):
        for hh in range(2):
            a(f'buffer_load_dwordx2 {vr(QR+4*st+2*hh,2)}, v{7+st}, s[60:63], 0 offen offset:{32*hh}')
    a('s_mov_b32 s11, 0x3f80\ns_mov_b32 s12, 0x3f800000')
    a('s_waitcnt vmcnt(24)')
    for st in range(2):
        for hh in range(2):
            a(f'ds_read_b64_tr_b16 {vr(ZR+4*st+2*hh,2)}, v6 offset:{1024*hh + 32*st}')
    a('s_waitcnt vmcnt(22)')
    for i in range(8):
        a(f'v_lshlrev_b32 v{ACC+2*i}, 16, v{XR+i}\nv_and_b32 v{ACC+2*i+1}, 0xffff0000, v{XR+i}')
    for f in range(8):
        a(f's_waitcnt vmcnt({6 + 2*(7-f)})')
        for i in range(8):
            a(f'v_dot2c_f32_bf16 v{ACC+2*i}, s11, v{PR+8*f+i}')
            a(f'v_dot2c_f32_bf16 v{ACC+2*i+1}, s12, v{PR+8*f+i}')
    a('s_waitcnt vmcnt(0) lgkmcnt(0)')
    for i in range(8):
        st = i // 4
        a(f'''
        v_lshlrev_b32 v12, 16, v{QR+i}
        v_and_b32 v13, 0xffff0000, v{QR+i}
        v_lshlrev_b32 v14, 16, v{ZR+i}
        v_and_b32 v15, 0xffff0000, v{ZR+i}
        v_fma_f32 v12, v12, v14, -v{ACC+2*i}
        v_fma_f32 v13, v13, v15, -v{ACC+2*i+1}
        v_fma_f32 v12, v12, v{10+st}, v{ACC+2*i}
        v_fma_f32 v13, v13, v{10+st}, v{ACC+2*i+1}
        v_cvt_pk_bf16_f32 v{PR+i}, v12, v13
        ''')
        if i % 2 == 1:
            hh = (i // 2) % 2
            a(f'buffer_store_dwordx2 {vr(PR+i-1,2)}, v{7+st}, s[64:67], 0 offen offset:{32*hh}')
    a.label(name + '_exit')
    a('s_endpgm')
    return dict(name=name, grid=288, block=256, lds=8192, vgpr=128, acc=128)

def main(path):
    a = Asm()
    ks = [k1(a), k2(a), k3(a), k4(a)]
    hdr = open('gated_mix__ssm_conv_h3__mixer_s_mlp__prompt.s.ref').read().split('\n')
    hdr = [l for l in hdr if l.startswith(';') and '@launch' not in l and 'Override' not in l and 'grid=ceil' not in l]
    out = '\n'.join(hdr) + '\n'
    for k in ks:
        out += f"; @launch kernel={k['name']} grid=({k['grid']},1,1) block=({k['block']},1,1) lds={k['lds']}\n"
    out += '.amdgcn_target "amdgcn-amd-amdhsa--gfx950"\n.text\n' + a.text()
    out += '.section .rodata,"a"\n'
    for k in ks:
        out += f""".p2align 6
.amdhsa_kernel {k['name']}
  .amdhsa_next_free_vgpr {k['vgpr']}
  .amdhsa_next_free_sgpr 96
  .amdhsa_accum_offset {k['acc']}
  .amdhsa_group_segment_fixed_size 0
  .amdhsa_kernarg_size 120
  .amdhsa_user_sgpr_count 2
  .amdhsa_user_sgpr_kernarg_segment_ptr 1
  .amdhsa_system_sgpr_workgroup_id_x 1
.end_amdhsa_kernel
"""
    open(path, 'w').write(out)
    print('wrote', path, 'nops inserted', a.nops, 'lines', len(a.out))

if __name__ == '__main__':
    main(sys.argv[1] if len(sys.argv) > 1 else 'gated_mix__ssm_conv_h3__mixer_s_mlp__prompt.s')
```
